```python
import torch

def _softmax(x, axis=-1):
    return torch.softmax(x, dim=axis)
def _gelu(x):
    return torch.nn.functional.gelu(x, approximate="tanh")
def _silu(x):
    return torch.nn.functional.silu(x)
def _sigmoid(x):
    return torch.sigmoid(x)
def _layernorm(x, axis=-1, eps=1e-5):
    m = x.mean(dim=axis, keepdim=True)
    v = x.var(dim=axis, keepdim=True, unbiased=False)
    return (x - m) / torch.sqrt(v + eps)
def _scatter_add(tgt, idx, src, axis=0):
    return tgt.clone().index_add_(axis, idx, src)
def _segment_sum(src, seg, n):
    out = torch.zeros((n,) + src.shape[1:], dtype=src.dtype)
    return out.index_add_(0, seg, src)
def _pad(x, pw):
    flat = tuple(v for pair in reversed(pw) for v in pair)
    return torch.nn.functional.pad(x, flat)

kernel_name = 'concat_heads__mha_block_cached__gqa_block_cached__near_ridge'

def setup_inputs():

    _w = (lambda a: (lambda t: t.to(torch.bfloat16) if t.is_floating_point() else t)(torch.as_tensor(a)))
    def _A_setup():
        B, Sq, D = 8, 160, 576
        H, Sk, Dh = 32, 1024, 128
        return {
            "x": _w((lambda *s: torch.randn(*s, dtype=torch.bfloat16) * 0.8)(B, Sq, D)),
            "k_cache": _w((lambda *s: torch.randn(*s, dtype=torch.bfloat16) * 0.8)(B, H, Sk, Dh)),
            "v_cache": _w((lambda *s: torch.randn(*s, dtype=torch.bfloat16) * 0.05)(B, H, Sk, Dh)),
            "wq": _w((lambda *s: torch.randn(*s, dtype=torch.bfloat16) * 0.8)(D, H * Dh) * (D ** -0.5)),
            "wo": _w((lambda *s: torch.randn(*s, dtype=torch.bfloat16) * 0.05)(H * Dh, D) * ((H * Dh) ** -0.5)),
        }
    _A_in = _A_setup()

    def _B_setup():
        B, Sq, D = 8, 160, 576
        Hq, Hkv, Sk, Dh = 32, 32, 1024, 128
        assert Hq % Hkv == 0, (Hq, Hkv)
        return {
            "x": _w((lambda *s: torch.randn(*s, dtype=torch.bfloat16) * 0.8)(B, Sq, D)),
            "k_cache": _w((lambda *s: torch.randn(*s, dtype=torch.bfloat16) * 0.8)(B, Hkv, Sk, Dh)),
            "v_cache": _w((lambda *s: torch.randn(*s, dtype=torch.bfloat16) * 0.05)(B, Hkv, Sk, Dh)),
            "wq": _w((lambda *s: torch.randn(*s, dtype=torch.bfloat16) * 0.8)(D, Hq * Dh) * (D ** -0.5)),
            "wo": _w((lambda *s: torch.randn(*s, dtype=torch.bfloat16) * 0.05)(Hq * Dh, D) * ((Hq * Dh) ** -0.5)),
        }
    _B_in = _B_setup()

    return {
        "A_x": _A_in["x"],
        "A_k_cache": _A_in["k_cache"],
        "A_v_cache": _A_in["v_cache"],
        "A_wq": _A_in["wq"],
        "A_wo": _A_in["wo"],
        "B_x": _B_in["x"],
        "B_k_cache": _B_in["k_cache"],
        "B_v_cache": _B_in["v_cache"],
        "B_wq": _B_in["wq"],
        "B_wo": _B_in["wo"],
    }

def reference(A_x, A_k_cache, A_v_cache, A_wq, A_wo, B_x, B_k_cache, B_v_cache, B_wq, B_wo):
    def _A_ref(x, k_cache, v_cache, wq, wo):
        B, Sq, D = x.shape
        H, Dh = 32, 128
        q = (lambda x, *d: x.permute(*d))((x @ wq).reshape(B, Sq, H, Dh), 0, 2, 1, 3)
        scores = torch.einsum("bhqd,bhkd->bhqk", q, k_cache) * (Dh ** -0.5)
        p = _softmax(scores, axis=-1)
        o = torch.einsum("bhqk,bhkd->bhqd", p, v_cache)
        return (lambda x, *d: x.permute(*d))(o, 0, 2, 1, 3).reshape(B, Sq, H * Dh) @ wo

    def _B_ref(x, k_cache, v_cache, wq, wo):
        B, Sq, D = x.shape
        Hq, Dh = 32, 128
        Hkv = k_cache.shape[1]
        rep = Hq // Hkv
        q = (lambda x, *d: x.permute(*d))((x @ wq).reshape(B, Sq, Hq, Dh), 0, 2, 1, 3)
        k = (lambda x, n, axis: torch.repeat_interleave(x, n, dim=axis))(k_cache, rep, axis=1)
        v = (lambda x, n, axis: torch.repeat_interleave(x, n, dim=axis))(v_cache, rep, axis=1)
        scores = torch.einsum("bhqd,bhkd->bhqk", q, k) * (Dh ** -0.5)
        p = _softmax(scores, axis=-1)
        o = torch.einsum("bhqk,bhkd->bhqd", p, v)
        return (lambda x, *d: x.permute(*d))(o, 0, 2, 1, 3).reshape(B, Sq, Hq * Dh) @ wo

    a = _A_ref(A_x, A_k_cache, A_v_cache, A_wq, A_wo)
    b = _B_ref(B_x, B_k_cache, B_v_cache, B_wq, B_wo)
    return torch.concatenate([a, b], axis=-1)
```

```python
class Asm:
    def __init__(self):
        self.L=[]
    def __call__(self, s):
        for line in s.strip("\n").split("\n"):
            self.L.append(line if (line.strip().endswith(":") or line.startswith(".")) else "  "+line.strip())
    def label(self, n): self.L.append(n+":")
    def raw(self, s): self.L.append(s)
    def text(self): return "\n".join(self.L)+"\n"

def v(a,n=1): return f"v{a}" if n==1 else f"v[{a}:{a+n-1}]"
def a(a_,n=1): return f"a{a_}" if n==1 else f"a[{a_}:{a_+n-1}]"
def s(a_,n=1): return f"s{a_}" if n==1 else f"s[{a_}:{a_+n-1}]"

def interleave(asm, mfmas, gaps):
    assert len(gaps)==len(mfmas), (len(gaps), len(mfmas))
    for m,g in zip(mfmas,gaps):
        asm(m)
        for x in g: asm(x)
```

```python
from asmlib import *
import struct, math

V_LANE=1
V_XADDR=4; V_WADDR=5
V_CA=9
V_CB=13
V_L16=16
V_TMP=20
V_KA=36; V_VA=40; V_MY=48; V_NEGM=52; V_P=72; V_S=80; V_O=96
def O(db,qb): return V_O+4*(db*5+qb)
def QACC(t,e,qb): return V_O+4*((t*2+e)*5+qb)
def S(par,kb): return V_S+8*par+4*kb
def P(par): return V_P+4*par
def NEGM(qb): return V_NEGM+4*qb
def QF(qb,t): return 4*(qb*4+t)
def KF(par,kb,t4): return 80+32*par+16*kb+4*t4
def VF(par,db): return 144+32*par+4*db
def LF(qb): return 208+4*qb
def XF(ph,qb): return 80+20*ph+4*qb
def WF(ph,t,e): return 120+32*ph+8*t+4*e
A_ONES=228; A_ZERO=232
S_SRDW=4; S_SRDX=8; S_SRDMY=12; S_SRDO=16
S_W=20; S_QH=21; S_HH=22; S_B=23; S_H=24; S_PRB=25
S_SOFFW=26; S_SOFFX=27; S_MW=28; S_MX=29
S_ASOFF=36; S_MYLDS=39; S_ITER=40
S_T0=45; S_T1=46; S_T2=47
S_PTR=48
S_WS=64
S_C=70; S_FLAG=74
K_RING=0; V_RING=65536; X_ST=32768; X_STRIDE=10240; W_ST=98304; W_STRIDE=16384
LDS_BYTES=163840
SCALE=math.log2(math.e)/math.sqrt(128.0)
def f32hex(x): return "0x%08x"%struct.unpack("<I",struct.pack("<f",x))[0]

STAMP=False
STAMPI="s_memrealtime"
KV_POL="nt"; CH_POL=""; O_POL=""
MF="v_mfma_f32_16x16x32_bf16"
def mfma(d,a_,b_,c): return f"{MF} {d}, {a_}, {b_}, {c}"

def stamp(A, idx):
    if not STAMP: return
    A(f"{STAMPI} s[78:79]")
    A("s_waitcnt lgkmcnt(0)")
    A(f"s_mov_b32 s{80+idx}, s78")
def stamp_out(A):
    if not STAMP: return
    A(f"""
s_add_u32 s76, {s(S_WS)}, 0x4000000
s_addc_u32 s77, {s(S_WS+1)}, 0
s_mov_b32 s78, 0x100000
s_mov_b32 s79, 0x20000
s_lshl_b32 s3, s2, 2
s_add_u32 s3, s3, {s(S_W)}
s_lshl_b32 s3, s3, 6
v_mov_b32 v2, s3
""")
    for i in range(12):
        A(f"v_mov_b32 v3, s{80+i}")
        A(f"buffer_store_dword v3, v2, s[76:79], 0 offen offset:{4*i}")
        A("s_nop 1")

def zero_regs(A, kind, start, n):
    R = v if kind=='v' else a
    i=0
    while i<n:
        if n-i>=16:
            A(f"v_mfma_f32_32x32x16_bf16 {R(start+i,16)}, {a(A_ZERO,4)}, {a(A_ZERO,4)}, 0"); i+=16
        else:
            A(f"{MF} {R(start+i,4)}, {a(A_ZERO,4)}, {a(A_ZERO,4)}, 0"); i+=4

def chunk_dmas(stage):
    L=[]
    L.append(f"s_add_u32 m0, {s(S_MW)}, {stage*W_STRIDE}")
    for j in range(4):
        L.append(f"buffer_load_dwordx4 {v(V_CA+j)}, {s(S_SRDW,4)}, {s(S_SOFFW)} offen offset:{1024*j} {CH_POL} lds")
    L.append(f"s_add_u32 m0, {s(S_MX)}, {stage*X_STRIDE}")
    L.append(f"s_add_u32 {s(S_SOFFW)}, {s(S_SOFFW)}, 262144")
    for j in range(3):
        L.append(f"buffer_load_dwordx4 {v(V_CB+j)}, {s(S_SRDX,4)}, {s(S_SOFFX)} offen offset:{1024*j} {CH_POL} lds")
    L.append(f"s_add_u32 {s(S_SOFFX)}, {s(S_SOFFX)}, 64")
    return L

def att_dma(p):
    return f"buffer_load_dwordx4 {v(V_MY+(p&3))}, {s(S_SRDMY,4)}, {s(S_ASOFF)} offen offset:{1024*(p&3)} {KV_POL} lds"
def kv_group(m0expr):
    return [m0expr, "s_nop 0"]+[att_dma(p) for p in range(4)]+[f"s_add_u32 {s(S_ASOFF)}, {s(S_ASOFF)}, 4096"]

NO_QDMA=False; NO_QREAD=False; NO_QBAR=False; Q_XONLY=False; Q_WONLY=False
PREFETCH=True; PF_POL=""
def l2_prefetch(A):
    gw=S_T0
    A(f"""
s_lshr_b32 {s(gw)}, s2, 3
s_lshl_b32 {s(gw)}, {s(gw)}, 2
s_add_u32 {s(gw)}, {s(gw)}, {s(S_W)}
s_mul_i32 {s(S_T1)}, {s(gw)}, 90
v_add_u32 v20, {s(S_T1)}, {v(V_LANE)}
v_lshlrev_b32 v20, 7, v20
v_add_u32 v21, 8192, v20
v_cmp_gt_u32 vcc, 26, {v(V_LANE)}
s_mul_i32 {s(S_T1)}, {s(gw)}, 72
v_mov_b32 v24, 0x80000000
v_cndmask_b32 v21, v24, v21, vcc
v_add_u32 v22, {s(S_T1)}, {v(V_LANE)}
v_add_u32 v23, 64, v22
v_and_b32 v25, 15, v22
v_lshrrev_b32 v22, 4, v22
v_lshlrev_b32 v22, 13, v22
v_lshl_add_u32 v22, v25, 7, v22
v_and_b32 v25, 15, v23
v_lshrrev_b32 v23, 4, v23
v_lshlrev_b32 v23, 13, v23
v_lshl_add_u32 v23, v25, 7, v23
v_cmp_gt_u32 vcc, 8, {v(V_LANE)}
s_mov_b32 s92, {s(S_PTR)}
s_mov_b32 s93, {s(S_PTR+1)}
v_cndmask_b32 v23, v24, v23, vcc
s_mov_b32 s94, 1474560
s_mov_b32 s95, 0x20000
buffer_load_dword v3, v20, s[92:95], 0 offen {PF_POL}
buffer_load_dword v3, v21, s[92:95], 0 offen {PF_POL}
s_bfe_u32 {s(S_T1)}, s2, 0x20001
s_lshl_b32 {s(S_T1)}, {s(S_T1)}, 11
s_add_u32 s92, {s(S_PTR+6)}, {s(S_T1)}
s_addc_u32 s93, {s(S_PTR+7)}, 0
s_sub_u32 s94, 4718592, {s(S_T1)}
buffer_load_dword v3, v22, s[92:95], 0 offen {PF_POL}
buffer_load_dword v3, v23, s[92:95], 0 offen {PF_POL}
""")

def x_read(ph,qb,stage):
    return f"ds_read_b128 {a(XF(ph,qb),4)}, {v(V_XADDR)} offset:{stage*X_STRIDE+qb*1024}"
def w_reads(ph,t,e,stage):
    r=WF(ph,t,e)
    return [f"ds_read_b64_tr_b16 {a(r+2*u,2)}, {v(V_WADDR+t)} offset:{stage*W_STRIDE+u*1024+e*8}" for u in range(2)]
def chunk_reads(ph,stage):
    L=[]
    for qb in range(5): L.append(x_read(ph,qb,stage))
    for t in range(4):
        for e in range(2): L+=w_reads(ph,t,e,stage)
    return L

def issue_first_chunks(A):
    for st in range(3):
        d=chunk_dmas(st)
        A(d[0]); A("s_nop 0")
        for x in d[1:]: A(x)
    if PREFETCH: l2_prefetch(A)

def qproj_phase(A):
    npf = 4 if PREFETCH else 0
    zero_regs(A,'v',V_O,160)
    A(f"s_waitcnt vmcnt({14+npf})")
    A("s_barrier")
    stamp(A,7)
    for x in chunk_reads(0,0): A(x)
    A(f"s_waitcnt vmcnt({7+npf}) lgkmcnt(0)")
    A("s_barrier")
    A(f"s_mov_b32 {s(S_ITER)}, 0")
    A("s_mov_b64 vcc, 0")
    A(".p2align 4")
    A.label("Q_loop")
    if STAMP:
        A(f"{STAMPI} s[78:79]")
        A("s_waitcnt lgkmcnt(0)")
        for it in range(3):
            A(f"s_cmp_eq_u32 {s(S_ITER)}, {it}")
            A(f"s_cselect_b32 s{88+it}, s78, s{88+it}")
    for u in range(6):
        ph=u&1; st=u%3; stn=(u+1)%3
        M=[]
        for t in range(4):
            for e in range(2):
                for qb in range(5):
                    d=v(QACC(t,e,qb),4)
                    M.append(mfma(d, a(WF(ph,t,e),4), a(XF(ph,qb),4), d))
        gaps=[[] for _ in M]
        rd=chunk_reads(ph^1,stn)
        dm=chunk_dmas(st)
        if NO_QDMA: dm=[x if not x.startswith("buffer") else "s_nop 0" for x in dm]
        if Q_XONLY: dm=[x if not (x.startswith("buffer") and "s[4:7]" in x) else "s_nop 0" for x in dm]
        if Q_WONLY: dm=[x if not (x.startswith("buffer") and "s[8:11]" in x) else "s_nop 0" for x in dm]
        if NO_QREAD: rd=[]
        grp=[[dm[0]],[dm[1]],[dm[2]],[dm[3]],[dm[4],dm[5]],[dm[6],dm[7]],[dm[8]],[dm[9],dm[10]]]
        pos=[0,3,8,13,18,23,28,33]
        if u>=3:
            T=u-3
            kv=[]
            if T<2:
                g0=kv_group(f"s_add_u32 m0, {s(S_MYLDS)}, {T*16384}")
                g1=kv_group(f"s_add_u32 m0, {s(S_MYLDS)}, {T*16384+4096}")
                kv=[[g0[0]],[g0[2]],[g0[3]],[g0[4]],[g0[5],g0[6],g1[0]],[g1[2],g1[3]],[g1[4]],[g1[5],g1[6]]]
            for k,(g_,p_) in enumerate(zip(grp,pos)):
                lbl=f"Q_sk{u}_{k}"
                if kv:
                    gaps[p_]+= [f"s_cbranch_vccnz {lbl}"]+g_+[f"s_branch {lbl}e", f"{lbl}:"]+kv[k]+[f"{lbl}e:"]
                else:
                    gaps[p_]+= [f"s_cbranch_vccnz {lbl}"]+g_+[f"{lbl}:"]
        else:
            for g_,p_ in zip(grp,pos): gaps[p_]+=g_
        free=[i for i in range(1,36) if not gaps[i]]
        assert len(free)>=len(rd), (len(free),len(rd))
        for i,r in enumerate(rd): gaps[free[i]].append(r)
        if u<3:
            end=["s_waitcnt vmcnt(7) lgkmcnt(0)"]
        elif u==3:
            end=["s_waitcnt lgkmcnt(0)", "s_cbranch_vccnz Q_w3a", "s_waitcnt vmcnt(7)", "s_branch Q_w3b", "Q_w3a:", "s_waitcnt vmcnt(8)", "Q_w3b:"]
        else:
            end=["s_waitcnt lgkmcnt(0)", f"s_cbranch_vccnz Q_w{u}", "s_waitcnt vmcnt(7)", f"Q_w{u}:"]
        if u==5:
            end+=[f"s_add_u32 {s(S_ITER)}, {s(S_ITER)}, 1", f"s_cmp_eq_u32 {s(S_ITER)}, 2", "s_cselect_b64 vcc, -1, 0", f"s_cmp_lt_u32 {s(S_ITER)}, 3"]
        if not NO_QBAR: end+=["s_barrier"]
        if u==5: end+=["s_cbranch_scc1 Q_loop"]
        gaps[39]+=end
        interleave(A,M,gaps)

def qproj_epilogue(A):
    dm=[]
    for T in (2,3):
        for half in range(2):
            dm+=kv_group(f"s_add_u32 m0, {s(S_MYLDS)}, {T*16384+half*4096}")
    A("s_nop 7")
    k=0
    for qb in range(5):
        for t in range(4):
            tm=V_TMP+4*(k%4); k+=1
            for e in range(2):
                r=QACC(t,e,qb)
                A(f"v_pk_mul_f32 {v(r,2)}, {v(r,2)}, {s(S_C,2)}")
                A(f"v_pk_mul_f32 {v(r+2,2)}, {v(r+2,2)}, {s(S_C,2)}")
            for _ in range(2):
                if dm: A(dm.pop(0))
            for e in range(2):
                r=QACC(t,e,qb)
                A(f"v_cvt_pk_bf16_f32 {v(tm+2*e)}, {v(r)}, {v(r+1)}")
                A(f"v_cvt_pk_bf16_f32 {v(tm+2*e+1)}, {v(r+2)}, {v(r+3)}")
            for i in range(4): A(f"v_accvgpr_write_b32 {a(QF(qb,t)+i)}, {v(tm+i)}")
    assert not dm

def k_read(par,kb,t4,slot): return f"ds_read_b128 {a(KF(par,kb,t4),4)}, {v(V_KA+t4)} offset:{slot*16384+kb*4096}"
def v_reads(par,db,slot): return [f"ds_read_b64_tr_b16 {a(VF(par,db)+2*u,2)}, {v(V_VA+db)} offset:{slot*16384+u*4096}" for u in range(2)]

def qk_mfmas(sp, kpar, jn):
    M=[]
    for t4 in range(4):
        for kb in range(2):
            d=v(S(sp,kb),4)
            M.append(mfma(d, a(KF(kpar,kb,t4),4), a(QF(jn,t4),4), v(NEGM(jn),4) if t4==0 else d))
    return M
def pv_mfmas(pp, vpar, jp):
    M=[mfma(a(LF(jp),4), a(A_ONES,4), v(P(pp),4), a(LF(jp),4))]
    for db in range(8):
        d=v(O(db,jp),4)
        M.append(mfma(d, a(VF(vpar,db),4), v(P(pp),4), d))
    return M

def att_step(A, t, last_in_body):
    par=t&1; wslot=t%4; rslot=(t+1)%4
    X=[[] for _ in range(5)]
    kr=[k_read(par^1,kb,t4,rslot) for t4 in range(4) for kb in range(2)]
    vr=[]
    for db in range(8): vr+=v_reads(par^1,db,rslot)
    X[0]=[f"s_add_u32 m0, {s(S_MYLDS)}, {wslot*16384}", kr[0], att_dma(0), kr[1], kr[2], att_dma(1), kr[3], kr[4], att_dma(2), kr[5], kr[6], att_dma(3),
          f"s_add_u32 {s(S_ASOFF)}, {s(S_ASOFF)}, 4096", kr[7]]
    X[1]=[f"s_add_u32 m0, {s(S_MYLDS)}, {wslot*16384+4096}", vr[0], att_dma(4), vr[1], vr[2], att_dma(5), vr[3], vr[4], att_dma(6), vr[5]]
    X[2]=[att_dma(7), vr[6], f"s_add_u32 {s(S_ASOFF)}, {s(S_ASOFF)}, 4096", vr[7], vr[8], vr[9], vr[10]]
    X[3]=[vr[11], vr[12], vr[13], vr[14], vr[15]]
    X[4]=[]
    for j in range(5):
        sp=(par+j)&1
        jn=(j+1)%5; jp=(j-1)%5
        kpar = par if j<4 else par^1
        vpar = par^1 if j==0 else par
        M=qk_mfmas(sp^1,kpar,jn)+pv_mfmas(sp^1,vpar,jp)
        s0=S(sp,0); pp=P(sp)
        e=[f"v_exp_f32 {v(s0+i)}, {v(s0+i)}" for i in range(8)]
        c=[f"v_cvt_pk_bf16_f32 {v(pp+i)}, {v(s0+2*i)}, {v(s0+2*i+1)}" for i in range(4)]
        gaps=[[] for _ in range(17)]
        for i in range(8): gaps[2*i].append(e[i])
        for i in range(4): gaps[4*i+3].append(c[i])
        xs=list(X[j])
        pre=[]
        if j==4: pre=["s_waitcnt lgkmcnt(15)"]
        cap={1:2,3:1,5:2,7:1,9:2,11:1,13:2,15:1,16:2}
        for gi in sorted(cap):
            for _ in range(cap[gi]):
                if xs: gaps[gi].append(xs.pop(0))
        assert not xs, (j,xs)
        if j==4:
            end=["s_waitcnt vmcnt(16) lgkmcnt(0)"]
            if last_in_body:
                end=[f"s_add_u32 {s(S_ITER)}, {s(S_ITER)}, 1", f"s_cmp_lt_u32 {s(S_ITER)}, 8"]+end+["s_barrier","s_cbranch_scc1 ATT_loop"]
            else:
                end+=["s_barrier"]
            gaps[16]+=end
        for x in pre: A(x)
        interleave(A,M,gaps)

def finish_store(A):
    T=V_TMP
    A("s_nop 7")
    A("s_nop 1")
    for qb in range(5): A(f"v_accvgpr_read_b32 {v(T+qb)}, {a(LF(qb))}")
    A(f"v_mov_b32 {v(T+10)}, 0x71800000")
    A(f"s_mov_b64 {s(S_FLAG,2)}, 0")
    for qb in range(5):
        A(f"v_cmp_nle_f32 vcc, 1.0, {v(T+qb)}")
        A("s_nop 1")
        A(f"s_or_b64 {s(S_FLAG,2)}, {s(S_FLAG,2)}, vcc")
        A(f"v_cmp_nlt_f32 vcc, {v(T+qb)}, {v(T+10)}")
        A("s_nop 1")
        A(f"s_or_b64 {s(S_FLAG,2)}, {s(S_FLAG,2)}, vcc")
    for qb in range(5): A(f"v_rcp_f32 {v(T+qb)}, {v(T+qb)}")
    A("s_nop 0")
    for qb in range(5):
        A(f"v_mov_b32 {v(T+12)}, {v(T+qb)}")
        A(f"v_mov_b32 {v(T+13)}, {v(T+qb)}")
        A(f"s_mov_b32 {s(S_T0)}, {qb*131072}")
        for u in range(4):
            d=V_S+4*(u%4)
            for i in range(2):
                k=O(2*u+i,qb)
                A(f"v_pk_mul_f32 {v(k,2)}, {v(k,2)}, {v(T+12,2)}")
                A(f"v_pk_mul_f32 {v(k+2,2)}, {v(k+2,2)}, {v(T+12,2)}")
            for i in range(2):
                k=O(2*u+i,qb)
                A(f"v_cvt_pk_bf16_f32 {v(d+2*i)}, {v(k)}, {v(k+1)}")
                A(f"v_cvt_pk_bf16_f32 {v(d+2*i+1)}, {v(k+2)}, {v(k+3)}")
            A(f"buffer_store_dwordx4 {v(d,4)}, {v(V_L16)}, {s(S_SRDO,4)}, {s(S_T0)} offen offset:{u*1024} {O_POL}")

def gen_k1(name):
    A=Asm()
    A(f".globl {name}\n.p2align 8\n.type {name},@function\n{name}:")
    A(f"""
s_cmp_ge_u32 s2, 256
s_cbranch_scc1 K1_END
s_and_b32 s3, s2, 1
s_mul_i32 {s(S_T0)}, s3, 40
s_add_u32 s0, s0, {s(S_T0)}
s_addc_u32 s1, s1, 0
s_load_dwordx8 {s(S_PTR,8)}, s[0:1], 0
s_sub_u32 s0, s0, {s(S_T0)}
s_subb_u32 s1, s1, 0
s_load_dwordx2 {s(S_WS,2)}, s[0:1], 96
v_and_b32 {v(V_LANE)}, 63, v0
v_lshrrev_b32 v2, 6, v0
s_mov_b32 {s(S_PRB)}, s3
s_bfe_u32 s3, s2, 0x20001
v_readfirstlane_b32 {s(S_W)}, v2
s_lshr_b32 {s(S_B)}, s2, 3
s_lshr_b32 {s(S_H)}, {s(S_B)}, 3  ; hp
s_and_b32 {s(S_B)}, {s(S_B)}, 7
s_lshl_b32 s3, s3, 3
s_lshl_b32 {s(S_H)}, {s(S_H)}, 1
s_add_u32 {s(S_H)}, {s(S_H)}, s3
s_lshr_b32 {s(S_HH)}, {s(S_W)}, 1
s_and_b32 {s(S_QH)}, {s(S_W)}, 1
s_add_u32 {s(S_H)}, {s(S_H)}, {s(S_HH)}
s_mov_b32 {s(S_C)}, {f32hex(SCALE)}
s_mov_b32 {s(S_C+1)}, {f32hex(SCALE)}
""")
    stamp(A,0)
    L=V_LANE; t0=20; t1=21; t2=22; t3=23; t4r=24
    q16=26; g=27; r4=28; c4=29
    A(f"""
v_and_b32 v{q16}, 15, v{L}
v_lshrrev_b32 v{g}, 4, v{L}
v_lshlrev_b32 {v(V_L16)}, 4, v{L}
v_lshrrev_b32 v{r4}, 2, v{q16}
v_and_b32 v{c4}, 3, v{L}
v_lshrrev_b32 v{t0}, 2, v{L}
v_lshrrev_b32 v{t1}, 3, v{t0}
v_mul_u32_u24 v{t1}, 3, v{t1}
v_xor_b32 v{t1}, v{c4}, v{t1}
v_lshlrev_b32 v{t1}, 4, v{t1}
v_mul_u32_u24 v{t0}, 1152, v{t0}
v_add_u32 v{t0}, v{t0}, v{t1}           ; lanepart_x
s_mul_i32 {s(S_T0)}, {s(S_W)}, 3
s_min_u32 {s(S_T0)}, {s(S_T0)}, 7
s_lshl_b32 {s(S_MX)}, {s(S_T0)}, 10
s_add_u32 {s(S_MX)}, {s(S_MX)}, {X_ST}
s_mul_i32 {s(S_T0)}, {s(S_T0)}, 18432
v_add_u32 {v(V_CB)}, {s(S_T0)}, v{t0}
v_add_u32 {v(V_CB+1)}, {18432-1024}, {v(V_CB)}
v_add_u32 {v(V_CB+2)}, {2*(18432-1024)}, {v(V_CB)}
v_lshlrev_b32 v{t1}, 2, v{g}
v_xor_b32 v{t1}, v{q16}, v{t1}
v_lshlrev_b32 v{t1}, 4, v{t1}
v_lshlrev_b32 v{t2}, 13, v{g}
v_add_u32 v{t1}, v{t1}, v{t2}           ; lanepart_w
s_lshl_b32 {s(S_T0)}, {s(S_QH)}, 17
v_add_u32 {v(V_CA)}, {s(S_T0)}, v{t1}
v_add_u32 {v(V_CA+1)}, {32768-1024}, {v(V_CA)}
v_add_u32 {v(V_CA+2)}, {2*(32768-1024)}, {v(V_CA)}
v_add_u32 {v(V_CA+3)}, {3*(32768-1024)}, {v(V_CA)}
s_lshl_b32 {s(S_MW)}, {s(S_HH)}, 13
s_lshl_b32 {s(S_T0)}, {s(S_QH)}, 12
s_add_u32 {s(S_MW)}, {s(S_MW)}, {s(S_T0)}
s_add_u32 {s(S_MW)}, {s(S_MW)}, {W_ST}
s_mov_b32 {s(S_SOFFW)}, 0
s_mov_b32 {s(S_SOFFX)}, 0
s_waitcnt lgkmcnt(0)
; SRDs
s_mul_i32 {s(S_T0)}, {s(S_B)}, 184320
s_add_u32 {s(S_SRDX)}, {s(S_PTR)}, {s(S_T0)}
s_addc_u32 {s(S_SRDX+1)}, {s(S_PTR+1)}, 0
s_mov_b32 {s(S_SRDX+2)}, 184320
s_mov_b32 {s(S_SRDX+3)}, 0x20000
s_lshl_b32 {s(S_T0)}, {s(S_H)}, 8
s_add_u32 {s(S_SRDW)}, {s(S_PTR+6)}, {s(S_T0)}
s_addc_u32 {s(S_SRDW+1)}, {s(S_PTR+7)}, 0
s_sub_u32 {s(S_SRDW+2)}, 4718592, {s(S_T0)}
s_mov_b32 {s(S_SRDW+3)}, 0x20000
""")
    issue_first_chunks(A)
    A(f"s_cmp_eq_u32 {s(S_QH)}, 0")
    A("s_cbranch_scc1 K1_myK")
    for pv in range(2):
        A(f"v_add_u32 v{t2}, {4*pv}, v{g}")
        A(f"v_lshlrev_b32 v{t2}, 1, v{t2}")
        A(f"v_xor_b32 v{t2}, v{q16}, v{t2}")
        A(f"v_lshlrev_b32 v{t2}, 4, v{t2}")
        A(f"v_lshl_add_u32 {v(V_MY+pv)}, v{g}, 8, v{t2}")
        A(f"v_mov_b32 {v(V_MY+pv+2)}, {v(V_MY+pv)}")
    A("s_branch K1_myD")
    A.label("K1_myK")
    for pv in range(4):
        A(f"v_add_u32 v{t2}, {4*pv}, v{g}")
        A(f"v_xor_b32 v{t2}, v{q16}, v{t2}")
        A(f"v_lshlrev_b32 v{t2}, 4, v{t2}")
        A(f"v_lshl_add_u32 {v(V_MY+pv)}, v{g}, 8, v{t2}")
    A.label("K1_myD")
    A(f"""
s_lshl_b32 {s(S_T0)}, {s(S_B)}, 5
s_add_u32 {s(S_T0)}, {s(S_T0)}, {s(S_H)}
s_lshr_b32 {s(S_T1)}, {s(S_T0)}, 14
s_lshl_b32 {s(S_T0)}, {s(S_T0)}, 18
s_cmp_eq_u32 {s(S_QH)}, 0
s_cselect_b32 {s(S_SRDMY)}, {s(S_PTR+2)}, {s(S_PTR+4)}
s_cselect_b32 {s(S_SRDMY+1)}, {s(S_PTR+3)}, {s(S_PTR+5)}
s_add_u32 {s(S_SRDMY)}, {s(S_SRDMY)}, {s(S_T0)}
s_addc_u32 {s(S_SRDMY+1)}, {s(S_SRDMY+1)}, {s(S_T1)}
s_mov_b32 {s(S_SRDMY+2)}, 262144
s_mov_b32 {s(S_SRDMY+3)}, 0x20000
s_mov_b32 {s(S_ASOFF)}, 0
s_mul_i32 {s(S_MYLDS)}, {s(S_QH)}, {V_RING}
s_lshl_b32 {s(S_T0)}, {s(S_HH)}, 13
s_add_u32 {s(S_MYLDS)}, {s(S_MYLDS)}, {s(S_T0)}
""")
    A(f"v_xor_b32 v{t2}, v{g}, v{q16}")
    A(f"v_lshlrev_b32 v{t3}, 8, v{q16}")
    A(f"v_add_u32 v{t3}, {s(S_T0)}, v{t3}")
    for t4 in range(4):
        A(f"v_xor_b32 v{t4r}, {4*t4}, v{t2}")
        A(f"v_lshl_add_u32 {v(V_KA+t4)}, v{t4r}, 4, v{t3}")
    A(f"v_lshl_add_u32 v{t2}, v{g}, 2, v{r4}")
    A(f"v_lshlrev_b32 v{t3}, 8, v{t2}")
    A(f"v_lshl_add_u32 v{t3}, v{c4}, 3, v{t3}")
    A(f"s_add_u32 {s(S_T1)}, {s(S_T0)}, {V_RING}")
    A(f"v_add_u32 v{t3}, {s(S_T1)}, v{t3}")
    A(f"v_and_b32 v{t2}, 7, v{t2}")
    for db in range(8):
        A(f"v_xor_b32 v{t4r}, {db}, v{t2}")
        A(f"v_lshl_add_u32 {v(V_VA+db)}, v{t4r}, 5, v{t3}")
    A(f"v_lshrrev_b32 v{t2}, 3, v{q16}")
    A(f"v_mul_u32_u24 v{t2}, 3, v{t2}")
    A(f"v_xor_b32 v{t2}, v{g}, v{t2}")
    A(f"v_lshlrev_b32 v{t2}, 4, v{t2}")
    A(f"v_lshl_add_u32 v{t2}, v{q16}, 6, v{t2}")
    A(f"s_mul_i32 {s(S_T1)}, {s(S_QH)}, 5120")
    A(f"s_add_u32 {s(S_T1)}, {s(S_T1)}, {X_ST}")
    A(f"v_add_u32 {v(V_XADDR)}, {s(S_T1)}, v{t2}")
    A(f"v_lshl_add_u32 v{t2}, v{g}, 3, v{r4}")
    A(f"v_lshlrev_b32 v{t2}, 8, v{t2}")
    A(f"v_lshl_add_u32 v{t2}, v{c4}, 4, v{t2}")
    A(f"s_add_u32 {s(S_T1)}, {s(S_T0)}, {W_ST}")
    A(f"v_add_u32 v{t2}, {s(S_T1)}, v{t2}")
    for t in range(4):
        A(f"v_xor_b32 v{t3}, {t}, v{r4}")
        A(f"v_lshl_add_u32 {v(V_WADDR+t)}, v{t3}, 6, v{t2}")
    A(f"v_mov_b32 v{t2}, 0x3f803f80")
    A(f"v_mov_b32 v{t3}, 0")
    for i in range(4):
        A(f"v_accvgpr_write_b32 {a(A_ONES+i)}, v{t2}")
        A(f"v_accvgpr_write_b32 {a(A_ZERO+i)}, v{t3}")
    for i in range(20): A(f"v_mov_b32 {v(V_NEGM+i)}, 0")
    A(f"""
s_mul_i32 {s(S_T0)}, {s(S_PRB)}, 10485760
s_mul_i32 {s(S_T1)}, {s(S_B)}, 10
s_mul_i32 {s(S_T2)}, {s(S_QH)}, 5
s_add_u32 {s(S_T1)}, {s(S_T1)}, {s(S_T2)}
s_lshl_b32 {s(S_T1)}, {s(S_T1)}, 17
s_add_u32 {s(S_T0)}, {s(S_T0)}, {s(S_T1)}
s_lshl_b32 {s(S_T1)}, {s(S_H)}, 12
s_add_u32 {s(S_T0)}, {s(S_T0)}, {s(S_T1)}
s_add_u32 {s(S_SRDO)}, {s(S_WS)}, {s(S_T0)}
s_addc_u32 {s(S_SRDO+1)}, {s(S_WS+1)}, 0
s_mov_b32 {s(S_SRDO+2)}, {4*131072+4096}
s_mov_b32 {s(S_SRDO+3)}, 0x20000
""")
    qproj_phase(A)
    stamp(A,1)
    qproj_epilogue(A)
    stamp(A,2)
    zero_regs(A,'v',V_O,160)
    zero_regs(A,'a',VF(1,0),52)
    for i in range(4): A(f"v_mov_b32 {v(P(1)+i)}, 0")
    A("s_waitcnt vmcnt(16)")
    A("s_barrier")
    for t4 in range(4):
        for kb in range(2): A(k_read(0,kb,t4,0))
    for db in range(8):
        for x in v_reads(0,db,0): A(x)
    A("s_waitcnt lgkmcnt(0)")
    A("s_barrier")
    for m in qk_mfmas(0,0,0): A(m)
    stamp(A,3)
    A(f"s_mov_b32 {s(S_ITER)}, 0")
    A("s_nop 7")
    A(".p2align 4")
    A.label("ATT_loop")
    for t in range(4): att_step(A,t,t==3)
    for m in pv_mfmas(1,1,4): A(m)
    stamp(A,4)
    finish_store(A)
    A(f"""
s_cmp_eq_u64 {s(S_FLAG,2)}, 0
s_cbranch_scc1 K1_ok
s_load_dwordx2 s[76:77], s[0:1], 88
s_waitcnt lgkmcnt(0)
s_mov_b32 s78, 256
s_mov_b32 s79, 0x20000
v_mov_b32 v2, 0
v_mov_b32 v3, 1
buffer_store_dword v3, v2, s[76:79], 0 offen
K1_ok:
""")
    if STAMP:
        stamp(A,5)
        A("s_waitcnt vmcnt(0)")
        stamp(A,6)
    stamp_out(A)
    A.label("K1_END")
    A("s_endpgm")
    return A.text()

def kd(name, vgpr=512, sgpr=96, accum=256):
    return f""".section .rodata,"a"
.p2align 6
.amdhsa_kernel {name}
  .amdhsa_next_free_vgpr {vgpr}
  .amdhsa_next_free_sgpr {sgpr}
  .amdhsa_accum_offset {accum}
  .amdhsa_group_segment_fixed_size 0
  .amdhsa_kernarg_size 104
  .amdhsa_user_sgpr_count 2
  .amdhsa_user_sgpr_kernarg_segment_ptr 1
  .amdhsa_system_sgpr_workgroup_id_x 1
.end_amdhsa_kernel
.text
"""
if __name__=="__main__":
    print(gen_k1("k1_kernel"))
```

```python
from asmlib import *
MF="v_mfma_f32_16x16x32_bf16"
W_POL=""; B_POL=""
def ACC(nb,rb): return 96+4*(nb*4+rb)
def BF(st,rb): return 32+16*st+4*rb
def AF(ph,nb): return 192+24*ph+4*nb
V_L16=2; V_WV=4; V_AE=10; V_AO=11; V_BV=12
S_SRDO=4; S_SRDW=8; S_SRDOUT=12
S_W=20; S_P=21; S_MT=22; S_NT=23; S_SW=24; S_SB=25; S_LDS=26; S_IT=27; S_T0=28; S_T1=29; S_T2=30
STG=6144
def w_dmas(st):
    L=[f"s_add_u32 m0, {s(S_LDS)}, {st*STG}"]
    for p in range(4): L.append(f"buffer_load_dwordx4 {v(V_WV+p)}, {s(S_SRDW,4)}, {s(S_SW)} offen offset:{1024*p} {W_POL} lds")
    L.append(f"s_add_u32 m0, {s(S_LDS)}, {st*STG+4096}")
    for p in range(4,6): L.append(f"buffer_load_dwordx4 {v(V_WV+p)}, {s(S_SRDW,4)}, {s(S_SW)} offen offset:{1024*(p-4)} {W_POL} lds")
    L.append(f"s_add_u32 {s(S_SW)}, {s(S_SW)}, 36864")
    return L
def b_loads(st):
    L=[f"buffer_load_dwordx4 {v(BF(st,rb),4)}, {v(V_BV+rb)}, {s(S_SRDO,4)}, {s(S_SB)} offen {B_POL}" for rb in range(4)]
    L.append(f"s_add_u32 {s(S_SB)}, {s(S_SB)}, 1024")
    return L
def a_reads(ph,st):
    L=[]
    for nb in range(6):
        ad = V_AE if nb%2==0 else V_AO
        for u in range(2):
            L.append(f"ds_read_b64_tr_b16 {v(AF(ph,nb)+2*u,2)}, {v(ad)} offset:{st*STG+u*3072+32*nb}")
    return L
def gen_k2(name):
    A=Asm()
    A(f".globl {name}\n.p2align 8\n.type {name},@function\n{name}:")
    A(f"""
s_cmp_ge_u32 s2, 240
s_cbranch_scc1 K2_END
s_and_b32 {s(S_P)}, s2, 1
s_mul_i32 {s(S_T0)}, {s(S_P)}, 40
s_add_u32 s0, s0, {s(S_T0)}
s_addc_u32 s1, s1, 0
s_load_dwordx2 s[32:33], s[0:1], 32
s_sub_u32 s0, s0, {s(S_T0)}
s_subb_u32 s1, s1, 0
s_load_dwordx2 s[34:35], s[0:1], 80
s_load_dwordx2 s[36:37], s[0:1], 96
v_and_b32 v1, 63, v0
v_lshrrev_b32 v3, 6, v0
s_bfe_u32 {s(S_T0)}, s2, 0x20001      ; (x>>1)&3
s_lshr_b32 {s(S_T1)}, s2, 3           ; j 0..29
v_readfirstlane_b32 {s(S_W)}, v3
s_mul_hi_u32 {s(S_MT)}, {s(S_T1)}, 0x2aaaaaab   ; j/6
s_mul_i32 {s(S_T2)}, {s(S_MT)}, 6
s_sub_u32 {s(S_NT)}, {s(S_T1)}, {s(S_T2)}
s_mul_i32 {s(S_T0)}, {s(S_T0)}, 5
s_add_u32 {s(S_MT)}, {s(S_MT)}, {s(S_T0)}
v_lshlrev_b32 {v(V_L16)}, 4, v1
v_mov_b32 {v(V_BV)}, {v(V_L16)}
v_add_u32 {v(V_BV+1)}, 131072, {v(V_L16)}
v_add_u32 {v(V_BV+2)}, 262144, {v(V_L16)}
v_add_u32 {v(V_BV+3)}, 393216, {v(V_L16)}
s_mov_b32 {s(S_T0)}, 0x15555556
""")
    for p in range(6):
        imm=1024*p if p<4 else 1024*(p-4)
        A(f"v_add_u32 v16, {64*p}, v1")
        A(f"v_mul_hi_u32 v17, v16, {s(S_T0)}")
        A(f"v_mul_u32_u24 v18, 12, v17")
        A(f"v_sub_u32 v18, v16, v18")
        A(f"v_bfe_u32 v19, v17, 2, 1")
        A(f"v_lshlrev_b32 v19, 1, v19")
        A(f"v_xor_b32 v18, v18, v19")
        A(f"v_lshlrev_b32 v18, 4, v18")
        A(f"v_mul_u32_u24 v17, 1152, v17")
        A(f"v_add_u32 v17, v17, v18")
        A(f"v_subrev_u32 {v(V_WV+p)}, {imm}, v17")
    A(f"""
v_lshrrev_b32 v16, 4, v1           ; g
v_bfe_u32 v17, v1, 2, 2            ; r
v_lshl_add_u32 v17, v16, 2, v17    ; 4g+r
v_mul_u32_u24 v17, 192, v17
v_and_b32 v18, 3, v1
v_lshl_add_u32 v17, v18, 3, v17
s_mul_i32 {s(S_LDS)}, {s(S_W)}, {4*STG}
v_add_u32 v17, {s(S_LDS)}, v17
v_and_b32 v16, 1, v16
v_lshlrev_b32 v16, 5, v16
v_add_u32 {v(V_AE)}, v17, v16
v_sub_u32 {v(V_AO)}, v17, v16
s_waitcnt lgkmcnt(0)
; SRD O
s_mul_i32 {s(S_T0)}, {s(S_P)}, 10485760
s_lshl_b32 {s(S_T1)}, {s(S_MT)}, 19
s_add_u32 {s(S_T0)}, {s(S_T0)}, {s(S_T1)}
s_lshl_b32 {s(S_T1)}, {s(S_W)}, 15
s_add_u32 {s(S_T0)}, {s(S_T0)}, {s(S_T1)}
s_add_u32 {s(S_SRDO)}, s36, {s(S_T0)}
s_addc_u32 {s(S_SRDO+1)}, s37, 0
s_mov_b32 {s(S_SRDO+2)}, {3*131072+36*1024}
s_mov_b32 {s(S_SRDO+3)}, 0x20000
; SRD W
s_mul_i32 {s(S_T0)}, {s(S_W)}, 1179648
s_mul_i32 {s(S_T1)}, {s(S_NT)}, 192
s_add_u32 {s(S_T0)}, {s(S_T0)}, {s(S_T1)}
s_add_u32 {s(S_SRDW)}, s32, {s(S_T0)}
s_addc_u32 {s(S_SRDW+1)}, s33, 0
s_sub_u32 {s(S_SRDW+2)}, 1179648, {s(S_T1)}
s_mov_b32 {s(S_SRDW+3)}, 0x20000
s_lshl_b32 {s(S_T0)}, {s(S_MT)}, 2
s_add_u32 {s(S_T0)}, {s(S_T0)}, {s(S_W)}
s_mul_i32 {s(S_T0)}, {s(S_T0)}, {16*2304}
s_mul_i32 {s(S_T2)}, {s(S_P)}, 1152
s_add_u32 {s(S_T0)}, {s(S_T0)}, {s(S_T2)}
s_add_u32 {s(S_T0)}, {s(S_T0)}, {s(S_T1)}
s_add_u32 {s(S_SRDOUT)}, s34, {s(S_T0)}
s_addc_u32 {s(S_SRDOUT+1)}, s35, 0
s_mov_b32 {s(S_SRDOUT+2)}, {15*2304+192}
s_mov_b32 {s(S_SRDOUT+3)}, 0x20000
s_mov_b32 {s(S_SW)}, 0
s_mov_b32 {s(S_SB)}, 0
""")
    for st in range(4):
        d=w_dmas(st)
        A(d[0]); A("s_nop 0")
        for x in d[1:5]: A(x)
        A(d[5]); A("s_nop 0")
        for x in d[6:]: A(x)
        for x in b_loads(st): A(x)
    for i in range(96): A(f"v_mov_b32 v{96+i}, 0")
    A("s_waitcnt vmcnt(34)")
    for x in a_reads(0,0): A(x)
    A(f"s_mov_b32 {s(S_IT)}, 0")
    A(".p2align 4")
    A.label("K2_loop")
    for u in range(4):
        st=u; ph=u&1
        A("s_waitcnt vmcnt(24) lgkmcnt(0)")
        M=[]
        for nb in range(6):
            for rb in range(4):
                d=v(ACC(nb,rb),4)
                M.append(f"{MF} {d}, {v(AF(ph,nb),4)}, {v(BF(st,rb),4)}, {d}")
        gaps=[[] for _ in M]
        rd=a_reads(ph^1,(st+1)&3)
        dm=w_dmas(st)
        gaps[0]+=[dm[0]]; gaps[1]+=[dm[1]]; gaps[4]+=[dm[2]]; gaps[7]+=[dm[3]]; gaps[10]+=[dm[4],dm[5]]; gaps[13]+=[dm[6]]; gaps[16]+=[dm[7],dm[8]]
        free=[i for i in range(0,20) if not gaps[i]]
        for i,r in enumerate(rd): gaps[free[i]].append(r)
        bl=b_loads(st)
        gaps[20]+=[bl[0]]; gaps[21]+=[bl[1]]; gaps[22]+=[bl[2]]; gaps[23]+=[bl[3],bl[4]]
        if u==3:
            gaps[23]+=[f"s_add_u32 {s(S_IT)}, {s(S_IT)}, 1", f"s_cmp_lt_u32 {s(S_IT)}, 8", "s_cbranch_scc1 K2_loop"]
        interleave(A,M,gaps)
    A("s_waitcnt vmcnt(0) lgkmcnt(0)")
    A("s_barrier")
    A(f"v_add_u32 v16, {s(S_LDS)}, {v(V_L16)}")
    for nb in range(6):
        for rb in range(4):
            A(f"ds_write_b128 v16, {v(ACC(nb,rb),4)} offset:{(nb*4+rb)*1024}")
    A(f"s_lshl_b32 {s(S_T0)}, {s(S_W)}, 10")
    A(f"v_add_u32 v17, {s(S_T0)}, {v(V_L16)}")
    A("v_add_u32 v18, 49152, v17")
    A("s_waitcnt lgkmcnt(0)")
    A("s_barrier")
    for nb in range(6):
        for w in range(4):
            ad = 17 if w<2 else 18
            A(f"ds_read_b128 {v(32+16*nb+4*w,4)}, v{ad} offset:{(w&1)*4*STG+nb*4096}")
    A("v_and_b32 v19, 15, v1")
    A("v_mul_u32_u24 v19, 2304, v19")
    A("v_lshrrev_b32 v20, 4, v1")
    A("v_lshl_add_u32 v19, v20, 3, v19")
    for nb in range(6):
        A(f"s_waitcnt lgkmcnt({min(15,4*(5-nb))})")
        r=32+16*nb
        for i in range(4):
            A(f"v_add_f32 v{r+i}, v{r+i}, v{r+4+i}")
            A(f"v_add_f32 v{r+8+i}, v{r+8+i}, v{r+12+i}")
        for i in range(4): A(f"v_add_f32 v{r+i}, v{r+i}, v{r+8+i}")
        A(f"v_cvt_pk_bf16_f32 v{r+4}, v{r}, v{r+1}")
        A(f"v_cvt_pk_bf16_f32 v{r+5}, v{r+2}, v{r+3}")
        A(f"buffer_store_dwordx2 v[{r+4}:{r+5}], v19, {s(S_SRDOUT,4)}, 0 offen offset:{32*nb}")
    A.label("K2_END")
    A("s_endpgm")
    return A.text()
def kd(name, vgpr=256, sgpr=64, accum=256):
    return f""".section .rodata,"a"
.p2align 6
.amdhsa_kernel {name}
  .amdhsa_next_free_vgpr {vgpr}
  .amdhsa_next_free_sgpr {sgpr}
  .amdhsa_accum_offset {accum}
  .amdhsa_group_segment_fixed_size 0
  .amdhsa_kernarg_size 104
  .amdhsa_user_sgpr_count 2
  .amdhsa_user_sgpr_kernarg_segment_ptr 1
  .amdhsa_system_sgpr_workgroup_id_x 1
.end_amdhsa_kernel
.text
"""
```

```python
import sys
sys.path.insert(0,'gen')
import k1c, k2
NAME="concat_heads__mha_block_cached__gqa_block_cached__near_ridge"
HDR=open('cdna_kernels/'+NAME+'.s.ref').read().split('; Override launch')[0]
def full(path, k1opts={}, k2opts={}):
    for k_,v_ in k1opts.items(): setattr(k1c,k_,v_)
    for k_,v_ in k2opts.items(): setattr(k2,k_,v_)
    n1=NAME+"_kernel"; n2="oproj_kernel"
    t=HDR
    t+=f"; @launch kernel={n1} grid=(256,1,1) block=(256,1,1) lds=163840\n"
    t+=f"; @launch kernel={n2} grid=(240,1,1) block=(256,1,1) lds=98304\n"
    t+='.amdgcn_target "amdgcn-amd-amdhsa--gfx950"\n.text\n'
    t+=k1c.gen_k1(n1)+k1c.kd(n1)
    t+=k2.gen_k2(n2)+k2.kd(n2)
    open(path,'w').write(t)
if __name__=="__main__":
    full('cdna_kernels/'+NAME+'.s')
    print("written")
```

```python
import sys, importlib
sys.path.insert(0,'gen')
import mkfull, k1c, k2
NAME=mkfull.NAME
def base():
    k1c.PREFETCH=True; k1c.PF_POL=""; k1c.CH_POL=""; k1c.KV_POL="nt"; k1c.O_POL=""; k2.W_POL=""; k2.B_POL=""
def mk(fn, k1o={}, k2o={}, dup=None):
    base(); p=f'cdna_kernels/{fn}.s'
    mkfull.full(p,k1o,k2o)
    if dup:
        t=open(p).read().split('\n')
        out=[]
        for l in t:
            out.append(l)
            if l.startswith('; @launch') and dup in l: out.append(l)
        open(p,'w').write('\n'.join(out))
if __name__=="__main__":
    mk('va', {}, {'W_POL':'nt','B_POL':'nt'})
    mk('vb', {'CH_POL':'nt','PF_POL':'nt'}, {'W_POL':'nt','B_POL':'nt'})
    mk('vc', {'CH_POL':'nt','PREFETCH':False}, {'W_POL':'nt','B_POL':'nt'})
    mk('vd', {'CH_POL':'nt','PF_POL':'nt','O_POL':'nt'}, {'W_POL':'nt','B_POL':'nt'})
    mk('ve', {'CH_POL':'nt','PF_POL':'nt'}, {'W_POL':'nt','B_POL':'nt'}, dup='oproj')
    mk('vf', {'CH_POL':'nt','PF_POL':'nt'}, {'W_POL':'nt','B_POL':'nt'}, dup='near_ridge_kernel')
```
